```python
import torch

def _softmax(x, axis=-1):
    return torch.softmax(x, dim=axis)

def _gelu(x):
    return torch.nn.functional.gelu(x, approximate='tanh')

def _silu(x):
    return torch.nn.functional.silu(x)

def _sigmoid(x):
    return torch.sigmoid(x)

def _layernorm(x, axis=-1, eps=1e-05):
    m = x.mean(dim=axis, keepdim=True)
    v = x.var(dim=axis, keepdim=True, unbiased=False)
    return (x - m) / torch.sqrt(v + eps)

def _scatter_add(tgt, idx, src, axis=0):
    return tgt.clone().index_add_(axis, idx, src)

def _segment_sum(src, seg, n):
    out = torch.zeros((n,) + src.shape[1:], dtype=src.dtype)
    return out.index_add_(0, seg, src)

def _pad(x, pw):
    flat = tuple((v for pair in reversed(pw) for v in pair))
    return torch.nn.functional.pad(x, flat)
kernel_name = 'recurrent_scan__memory_aug_recurrent_mem_tr__glu_gated_glu__prompt'

def setup_inputs():

    _w = lambda a: (lambda t: t.to(torch.bfloat16) if t.is_floating_point() else t)(torch.as_tensor(a))

    def _A_setup():
        B, S, Dm = (1, 2048, 448)
        H, Dh = (16, 256)
        M, seg = (8, 32)
        seg = min(seg, S)
        S = S // seg * seg
        return {'x': _w((lambda *s: torch.randn(*s, dtype=torch.bfloat16) * 0.05)(B, S, Dm)), 'mem0': _w((lambda *s: torch.randn(*s, dtype=torch.bfloat16) * 0.2)(B, M, Dm)), 'Wq': _w((lambda *s: torch.randn(*s, dtype=torch.bfloat16) * 0.8)(Dm, H, Dh) * Dm ** (-0.5)), 'Wk': _w((lambda *s: torch.randn(*s, dtype=torch.bfloat16) * 0.8)(Dm, H, Dh) * Dm ** (-0.5)), 'Wv': _w((lambda *s: torch.randn(*s, dtype=torch.bfloat16) * 0.2)(Dm, H, Dh) * Dm ** (-0.5)), 'Wo': _w((lambda *s: torch.randn(*s, dtype=torch.bfloat16) * 0.2)(H, Dh, Dm) * (H * Dh) ** (-0.5)), 'seg_len': seg}
    _A_in = _A_setup()

    def _B_setup():
        B, S, D, F = (1, 2048, 448, 1792)
        return {'x': _w((lambda *s: torch.randn(*s, dtype=torch.bfloat16) * 0.05)(B, S, D)), 'w_gate': _w((lambda *s: torch.randn(*s, dtype=torch.bfloat16) * 0.2)(D, F)), 'w_up': _w((lambda *s: torch.randn(*s, dtype=torch.bfloat16) * 0.1)(D, F)), 'w_down': _w((lambda *s: torch.randn(*s, dtype=torch.bfloat16) * 0.1)(F, D))}
    _B_in = _B_setup()
    return {'A_x': _A_in['x'], 'A_mem0': _A_in['mem0'], 'A_Wq': _A_in['Wq'], 'A_Wk': _A_in['Wk'], 'A_Wv': _A_in['Wv'], 'A_Wo': _A_in['Wo'], 'A_seg_len': _A_in['seg_len'], 'B_x': _B_in['x'], 'B_w_gate': _B_in['w_gate'], 'B_w_up': _B_in['w_up'], 'B_w_down': _B_in['w_down']}

def reference(A_x, A_mem0, A_Wq, A_Wk, A_Wv, A_Wo, A_seg_len, B_x, B_w_gate, B_w_up, B_w_down):

    def _A_ref(x, mem0, Wq, Wk, Wv, Wo, seg_len):
        B, S, Dm = x.shape
        H, Dh = (Wq.shape[1], Wq.shape[2])
        M = mem0.shape[1]
        scale = Dh ** (-0.5)
        n_seg = S // seg_len
        L = M + seg_len
        idx = torch.arange(L)
        mask = (idx[:, None] < M) | (idx[:, None] >= idx[None, :])
        mem = mem0
        outs = []
        for s in range(n_seg):
            xs = x[:, s * seg_len:(s + 1) * seg_len, :].clone()
            h = torch.concatenate([mem, xs], axis=1)
            q = torch.einsum('btd,dhe->bhte', h, Wq)
            k = torch.einsum('btd,dhe->bhte', h, Wk)
            v = torch.einsum('btd,dhe->bhte', h, Wv)
            scores = torch.einsum('bhqe,bhke->bhqk', q, k) * scale
            scores = torch.where(mask[None, None], scores, -1000000000.0)
            p = _softmax(scores, axis=-1)
            o = torch.einsum('bhqk,bhke->bhqe', p, v)
            o = torch.einsum('bhte,hed->btd', o, Wo)
            mem = o[:, :M, :].clone()
            outs.append(o[:, M:, :])
        return torch.concatenate(outs, axis=1)

    def _B_ref(x, w_gate, w_up, w_down):
        g = torch.einsum('bsd,df->bsf', x, w_gate)
        u = torch.einsum('bsd,df->bsf', x, w_up)
        h = _sigmoid(g) * u
        return torch.einsum('bsf,fd->bsd', h, w_down)
    x = A_x
    xn = _layernorm(x, axis=-1)
    s = _A_ref(xn, A_mem0, A_Wq, A_Wk, A_Wv, A_Wo, A_seg_len)
    g = _silu(_B_ref(xn, B_w_gate, B_w_up, B_w_down))
    return x + s * g
```

```python
class Asm:
    def __init__(self):
        self.lines = []
        self.nlab = 0
    def __call__(self, s):
        for l in s.strip('\n').split('\n'):
            l = l.rstrip()
            if not l.strip(): continue
            t = l.strip()
            if t.endswith(':') or t.startswith('.') or t.startswith(';'):
                self.lines.append(t)
            else:
                self.lines.append('  ' + t)
    def lab(self, base):
        self.nlab += 1
        return f'L_{base}_{self.nlab}'
    def text(self):
        return '\n'.join(self.lines) + '\n'

def v(i, n=1):
    return f'v{i}' if n == 1 else f'v[{i}:{i+n-1}]'
def a(i, n=1):
    return f'a{i}' if n == 1 else f'a[{i}:{i+n-1}]'
def s(i, n=1):
    return f's{i}' if n == 1 else f's[{i}:{i+n-1}]'

def kernel_header(name):
    return f""".globl {name}
.p2align 8
.type {name},@function
{name}:
"""

def kernel_desc(name, vgpr, accum, sgpr=102):
    return f""".amdhsa_kernel {name}
  .amdhsa_next_free_vgpr {vgpr}
  .amdhsa_next_free_sgpr {sgpr}
  .amdhsa_accum_offset {accum}
  .amdhsa_group_segment_fixed_size 0
  .amdhsa_kernarg_size 112
  .amdhsa_user_sgpr_count 2
  .amdhsa_user_sgpr_kernarg_segment_ptr 1
  .amdhsa_system_sgpr_workgroup_id_x 1
  .amdhsa_float_denorm_mode_32 3
.end_amdhsa_kernel
"""

def srd(A, dst, base, nbytes):
    A(f"""
    s_mov_b32 s{dst}, s{base}
    s_and_b32 s{dst+1}, s{base+1}, 0xffff
    s_mov_b32 s{dst+2}, {nbytes}
    s_mov_b32 s{dst+3}, 0x00020000
    """)
```

```python
from asmlib import *
from layout import *

FLAG_BYTES = 65536

def gen_prep(name='prep_kernel'):
    A = Asm()
    A(kernel_header(name))
    Lend = 'L_prep_end'
    A(f"""
    s_cmp_ge_u32 s2, 256
    s_cbranch_scc1 {Lend}
    s_load_dwordx4 s[36:39], s[0:1], 0      ; x, mem0
    s_load_dwordx4 s[40:43], s[0:1], 16
    s_load_dwordx4 s[44:47], s[0:1], 32
    s_load_dwordx2 s[48:49], s[0:1], 104    ; ws
    v_lshrrev_b32 v1, 6, v0
    v_and_b32 v0, 63, v0                    ; lane
    v_readfirstlane_b32 s20, v1             ; wave
    v_and_b32 v2, 15, v0                    ; m / n
    v_lshrrev_b32 v3, 4, v0                 ; g
    s_and_b32 s21, s2, 7
    s_lshr_b32 s22, s2, 3                   ; y
    s_waitcnt lgkmcnt(0)
    """)
    srd(A, 16, 48, WS_BYTES)
    A(f"""
    s_cmp_ge_u32 s22, 28
    s_cbranch_scc1 L_prep_ln
    s_mul_i32 s23, s22, 37                  ; y/7 = (y*37)>>8 for y<28
    s_lshr_b32 s23, s23, 8
    s_mul_i32 s24, s23, 7
    s_sub_u32 s22, s22, s24                 ; j = y%7
    s_lshl_b32 s21, s21, 2
    s_add_u32 s21, s21, s23                 ; set 0..31
    s_and_b32 s26, s21, 15                  ; head
    s_lshl_b32 s27, s22, 2
    s_add_u32 s27, s27, s20
    s_cmp_ge_u32 s21, 16
    s_cbranch_scc1 L_prep_B
    """)
    srd(A, 8, 42, 448*8192)
    srd(A, 12, 40, 448*8192)
    A(f"""
    ; tau -> (P,u): w = tau/7, t = tau%7
    s_mul_i32 s28, s27, 37
    s_lshr_b32 s28, s28, 8                  ; w
    s_mul_i32 s29, s28, 7
    s_sub_u32 s29, s27, s29                 ; t
    s_mul_i32 s30, s28, 3
    s_lshr_b32 s31, s29, 1
    s_add_u32 s30, s30, s31                 ; P (t<6)
    s_and_b32 s31, s29, 1                   ; u (t<6)
    s_lshr_b32 s32, s28, 1
    s_add_u32 s32, s32, 12
    s_and_b32 s33, s28, 1
    s_cmp_eq_u32 s29, 6
    s_cselect_b32 s30, s32, s30
    s_cselect_b32 s31, s33, s31
    s_lshl_b32 s30, s30, 5
    s_lshl_b32 s31, s31, 2
    s_add_u32 s30, s30, s31                 ; 32P+4u
    v_lshrrev_b32 v4, 2, v2                 ; gn
    v_and_b32 v5, 3, v2                     ; r
    v_lshl_add_u32 v4, v4, 3, v5            ; 8gn + r
    v_add_u32 v4, s30, v4                   ; d
    v_lshlrev_b32 v4, 13, v4                ; d*8192
    v_lshl_add_u32 v4, v3, 4, v4            ; + g*16
    s_lshl_b32 s24, s26, 9                  ; head*512
    s_mul_i32 s25, s26, {SET_BYTES}
    s_add_u32 s25, s25, {AW}
    """)
    for ks in range(8):
        A(f"buffer_load_dwordx4 {v(32+4*ks,4)}, v4, s[12:15], s24 offen offset:{64*ks}")
    A("s_branch L_prep_AB")
    A("L_prep_B:")
    srd(A, 8, 44, 448*8192)
    srd(A, 12, 46, 16*256*896)
    WO = 7*16384
    A(f"""
    v_lshrrev_b32 v4, 3, v0
    v_and_b32 v5, 7, v0                     ; chunk
    v_mul_u32_u24 v4, 896, v4
    v_lshl_add_u32 v4, v5, 4, v4
    s_mul_i32 s28, s26, {256*896}
    s_lshl_b32 s29, s22, 7                  ; j*128 bytes
    s_add_u32 s28, s28, s29
    s_mul_i32 s29, s20, {64*896}
    s_add_u32 s28, s28, s29
    s_lshl_b32 s29, s20, 13
    s_add_u32 s29, s29, {WO}
    s_lshl_b32 s24, s26, 9                  ; head*512
    s_mul_i32 s25, s26, {SET_BYTES}
    s_add_u32 s25, s25, {BW}
    """)
    for i in range(8):
        A(f"""
        s_mov_b32 m0, s29
        s_add_u32 s29, s29, 1024
        buffer_load_dwordx4 v4, s[12:15], s28 offen lds
        s_add_u32 s28, s28, {8*896}
        """)
    A("L_prep_AB:")
    A(f"""
    s_mul_i32 s28, s27, {14*1024}
    s_add_u32 s25, s25, s28
    v_lshlrev_b32 v6, 4, v0
    v_lshrrev_b32 v7, 2, v0                 ; m
    v_and_b32 v8, 3, v0                     ; gg
    v_lshrrev_b32 v9, 3, v7                 ; m>>3
    v_mul_u32_u24 v9, 3, v9
    v_xor_b32 v8, v8, v9                    ; g
    v_lshrrev_b32 v9, 2, v7                 ; gm
    v_and_b32 v7, 3, v7                     ; r
    v_lshl_add_u32 v7, v9, 3, v7            ; 8gm + r
    s_lshr_b32 s28, s20, 1                  ; u = wave>>1
    s_lshl_b32 s28, s28, 2
    v_add_u32 v7, s28, v7                   ; e local
    v_lshlrev_b32 v7, 13, v7
    v_lshl_add_u32 v7, v8, 4, v7            ; + g*16
    s_and_b32 s28, s20, 1
    s_lshl_b32 s28, s28, 8
    v_add_u32 v10, s28, v7
    v_add_u32 v11, 64, v10
    v_add_u32 v12, 128, v10
    v_add_u32 v13, 192, v10
    v_lshrrev_b32 v9, 3, v2
    v_mul_u32_u24 v9, 3, v9
    v_xor_b32 v9, v9, v3
    v_lshl_add_u32 v9, v2, 2, v9
    v_lshlrev_b32 v14, 4, v9
    v_add_u32 v15, 0x10000, v14
    s_lshl_b32 s34, s20, 12
    """)
    ops = []
    def dma(E):
        slot = E % 7
        for i in range(4):
            A(f"""
            s_add_u32 s28, s34, {slot*16384 + i*1024}
            s_mov_b32 m0, s28
            s_add_u32 s29, s24, {E*32*8192}
            buffer_load_dwordx4 v{10+i}, s[8:11], s29 offen lds
            """)
            ops.append(('dma', E))
    for E in range(7): dma(E)
    A(f"""
    s_cmp_lt_u32 s21, 16
    s_cbranch_scc1 L_prep_stat_done
    s_waitcnt vmcnt(28)
    s_barrier
    v_lshrrev_b32 v4, 2, v2                 ; rr
    v_and_b32 v5, 3, v2                     ; cc
    v_lshl_add_u32 v4, v3, 3, v4            ; 8g + rr
    v_lshlrev_b32 v4, 7, v4
    v_lshl_add_u32 v4, v5, 3, v4
    s_lshl_b32 s28, s20, 5
    s_add_u32 s28, s28, {WO}
    v_add_u32 v4, s28, v4
    """)
    for ks in range(8):
        for uu in range(2):
            A(f"ds_read_b64_tr_b16 {v(32+4*ks+2*uu,2)}, v4 offset:{(32*ks+4*uu)*128}")
        if ks == 3: A("s_waitcnt lgkmcnt(0)")
    A("""
    s_waitcnt lgkmcnt(0)
    L_prep_stat_done:
    """)
    FR = 64
    ACC = [128, 136]
    PK = 144
    def finalize(E):
        acc = ACC[E % 2]
        A(f"""
        v_cvt_pk_bf16_f32 v{PK}, v{acc}, v{acc+1}
        v_cvt_pk_bf16_f32 v{PK+1}, v{acc+2}, v{acc+3}
        v_cvt_pk_bf16_f32 v{PK+2}, v{acc+4}, v{acc+5}
        v_cvt_pk_bf16_f32 v{PK+3}, v{acc+6}, v{acc+7}
        s_add_u32 s28, s25, {E*1024}
        buffer_store_dwordx4 {v(PK,4)}, v6, s[16:19], s28 offen
        """)
        ops.append(('st', E))
    for E in range(14):
        last = max(i for i, o in enumerate(ops) if o == ('dma', E))
        n = len(ops) - 1 - last
        A(f"s_waitcnt vmcnt({n})\ns_barrier")
        slot = E % 7
        acc = ACC[E % 2]
        for f in range(8):
            A(f"ds_read_b128 {v(FR+4*f,4)}, v{14+slot//4} offset:{(slot%4)*16384 + f*1024}")
        if E >= 1 and E + 6 <= 13: dma(E + 6)
        if E >= 1: finalize(E - 1)
        for f in range(8):
            A(f"ds_read_b128 {v(FR+32+4*f,4)}, v{14+slot//4} offset:{(slot%4)*16384 + (8+f)*1024}" )
            out = 7
            A(f"s_waitcnt lgkmcnt(8)")
            c = '0' if f == 0 else v(acc,4)
            A(f"v_mfma_f32_16x16x32_bf16 {v(acc,4)}, {v(FR+4*f,4)}, {v(32+4*f,4)}, {c}")
        for f in range(8):
            A(f"s_waitcnt lgkmcnt({7-f})")
            c = '0' if f == 0 else v(acc+4,4)
            A(f"v_mfma_f32_16x16x32_bf16 {v(acc+4,4)}, {v(FR+32+4*f,4)}, {v(32+4*f,4)}, {c}")
    A("s_nop 7\ns_nop 1")
    finalize(13)
    A(f"s_branch {Lend}")
    A("L_prep_ln:")
    srd(A, 8, 36, 2048*896)
    A(f"""
    s_sub_u32 s22, s22, 28
    s_lshl_b32 s22, s22, 3
    s_add_u32 s22, s22, s21                 ; idx 0..31
    s_lshl_b32 s23, s22, 2
    s_add_u32 s23, s23, s20
    s_mul_i32 s24, s23, {16*896}
    v_mul_u32_u24 v4, 896, v2
    v_lshl_add_u32 v4, v3, 4, v4
    """)
    RAW = 8; X = 64
    for ks in range(14):
        A(f"buffer_load_dwordx4 {v(RAW+4*ks,4)}, v4, s[8:11], s24 offen offset:{64*ks}")
    fill_bytes = (MBP + 64*10240) - (MBM + 8192)
    A(f"""
    s_add_u32 s12, s48, {MBM+8192}
    s_addc_u32 s13, s49, 0
    s_and_b32 s13, s13, 0xffff
    s_mov_b32 s14, {fill_bytes}
    s_mov_b32 s15, 0x00020000
    s_lshl_b32 s25, s20, 6
    v_add_u32 v5, s25, v0
    v_lshlrev_b32 v5, 4, v5                 ; tid*16
    s_mul_i32 s25, s22, {9*4096}
    v_mov_b32 v176, -1
    v_mov_b32 v177, -1
    v_mov_b32 v178, -1
    v_mov_b32 v179, -1
    v_mov_b32 v180, 0
    v_mov_b32 v181, 0
    v_mov_b32 v182, 0
    v_mov_b32 v183, 0
    """)
    for i in range(9):
        A(f"buffer_store_dwordx4 v[176:179], v5, s[12:15], s25 offen\ns_add_u32 s25, s25, 4096")
    assert FLAG_BYTES == 32*2048
    A(f"""
    s_lshl_b32 s25, s22, 11
    s_add_u32 s25, s25, {FLAGS}
    s_lshl_b32 s26, s20, 6
    v_add_u32 v6, s26, v0
    v_lshlrev_b32 v6, 3, v6                 ; tid*8
    buffer_store_dwordx2 v[180:181], v6, s[16:19], s25 offen
    s_waitcnt vmcnt(10)
    """)
    for i in range(56):
        A(f"v_lshlrev_b32 v{X+2*i}, 16, v{RAW+i}\nv_and_b32 v{X+2*i+1}, 0xffff0000, v{RAW+i}")
    def allred(r, t):
        A(f"""
        v_mov_b32 v{t}, v{r}
        s_nop 1
        v_permlane16_swap_b32 v{r}, v{t}
        v_add_f32 v{r}, v{r}, v{t}
        v_mov_b32 v{t}, v{r}
        s_nop 1
        v_permlane32_swap_b32 v{r}, v{t}
        v_add_f32 v{r}, v{r}, v{t}
        """)
    for c in range(4):
        A(f"v_pk_add_f32 {v(8+2*c,2)}, {v(X+4*c,2)}, {v(X+4*c+2,2)}")
    for i in range(8, 56):
        c = i % 4
        A(f"v_pk_add_f32 {v(8+2*c,2)}, {v(8+2*c,2)}, {v(X+2*i,2)}")
    A("""
    v_pk_add_f32 v[8:9], v[8:9], v[10:11]
    v_pk_add_f32 v[12:13], v[12:13], v[14:15]
    v_pk_add_f32 v[8:9], v[8:9], v[12:13]
    v_add_f32 v8, v8, v9
    """)
    allred(8, 9)
    A(f"""
    v_mul_f32 v8, {-1.0/448!r}, v8
    v_mov_b32 v9, v8
    """)
    for i in range(56):
        A(f"v_pk_add_f32 {v(X+2*i,2)}, {v(X+2*i,2)}, v[8:9]")
    for c in range(4):
        A(f"v_pk_mul_f32 {v(10+2*c,2)}, {v(X+2*c,2)}, {v(X+2*c,2)}")
    for i in range(4, 56):
        c = i % 4
        A(f"v_pk_fma_f32 {v(10+2*c,2)}, {v(X+2*i,2)}, {v(X+2*i,2)}, {v(10+2*c,2)}")
    A("""
    v_pk_add_f32 v[10:11], v[10:11], v[12:13]
    v_pk_add_f32 v[14:15], v[14:15], v[16:17]
    v_pk_add_f32 v[10:11], v[10:11], v[14:15]
    v_add_f32 v10, v10, v11
    """)
    allred(10, 11)
    A(f"""
    v_mov_b32 v12, {1e-5!r}
    v_mov_b32 v13, {1.0/448!r}
    v_fma_f32 v10, v10, v13, v12
    v_rsq_f32 v10, v10
    s_mul_i32 s25, s23, {14*1024}
    s_add_u32 s25, s25, {XF}
    v_mov_b32 v11, v10
    v_lshlrev_b32 v6, 4, v0
    """)
    for ks in range(14):
        for j in range(4):
            i = 4*ks + j
            A(f"v_pk_mul_f32 {v(X+2*i,2)}, {v(X+2*i,2)}, v[10:11]")
        o = 16 + 4*(ks % 8)
        for j in range(4):
            i = 4*ks + j
            A(f"v_cvt_pk_bf16_f32 v{o+j}, v{X+2*i}, v{X+2*i+1}")
        A(f"buffer_store_dwordx4 {v(o,4)}, v6, s[16:19], s25 offen\ns_add_u32 s25, s25, 1024")
    A(f"""
    s_cmp_lg_u32 s23, 0
    s_cbranch_scc1 {Lend}
    """)
    srd(A, 8, 38, 8*896)
    A(f"""
    ; m = v2 : q = 2*(m>>2) + (m&1), h = (m>>1)&1
    v_lshrrev_b32 v4, 2, v2
    v_and_b32 v5, 1, v2
    v_lshl_add_u32 v4, v4, 1, v5            ; q
    v_mul_u32_u24 v4, 896, v4
    v_lshl_add_u32 v4, v3, 5, v4            ; + 32*kga
    v_and_b32 v5, 2, v2
    v_lshl_add_u32 v4, v5, 1, v4            ; + 4*h
    """)
    for ks in range(7):
        for p in range(4):
            A(f"buffer_load_dword v{64+4*ks+p}, v4, s[8:11], 0 offen offset:{128*ks+8*p}")
    A(f"s_waitcnt vmcnt(0)\ns_mov_b32 s25, {MBM}\ns_mov_b32 s26, 0xfffffffe")
    for i in range(28):
        A(f"v_min_u32 v{64+i}, s26, v{64+i}")
    for ks in range(7):
        A(f"buffer_store_dwordx4 {v(64+4*ks,4)}, v6, s[16:19], s25 offen\ns_add_u32 s25, s25, 1024")
    A(f"{Lend}:\ns_endpgm")
    return A.text(), kernel_desc(name, 256, 256), f"; @launch kernel={name} grid=(256,1,1) block=(256,1,1) lds={7*16384+32768}"
```

```python
XF   = 0x0000000
AW   = 0x0200000
BW   = 0x0900000
KX   = 0x1000000
VX   = 0x2C00000
SXX  = 0x4800000
PX   = 0x4C00000
VM   = 0x4F00000
HH   = 0x5600000
GATE = 0x5D00000
MBM  = 0x6100000
MBP  = 0x6180000
FLAGS= 0x6300000
WS_BYTES = 268435456
SET_BYTES = 28*14*1024
SENT = 0xFFFFFFFF
def tau_pu(tau):
    w, t = divmod(tau, 7)
    if t < 6: return 3*w + (t >> 1), t & 1
    return 12 + (w >> 1), w & 1
```

```python
import sys; sys.path.insert(0,'work')
from k_prep import *; from k_work import *; from k_chain import *; from k_fin import *; from build import *
from blib import *
Cfg.stamps = int(sys.argv[1]) if len(sys.argv)>1 else 0
Cfg.stamps_on = tuple(int(x) for x in sys.argv[2:])
asm = build([gen_prep(), gen_gemm_kernel(), gen_ffn2_kernel(), gen_chain_kernel(), gen_fin_kernel()])
open('stage4.s','w').write(asm)
co = assemble(asm, 'x', 14, 'st4', lists=True)
print(cl.address_register_problem(co, None, ['prep_kernel','gemm_kernel','ffn2_kernel','chain_kernel','fin_kernel']))
print([ (x*4682)>>16 == x//14 for x in range(896)].count(False))
```
